```python
import torch

def _softmax(x, axis=-1):
    return torch.softmax(x, dim=axis)
def _gelu(x):
    return torch.nn.functional.gelu(x, approximate="tanh")
def _silu(x):
    return torch.nn.functional.silu(x)
def _sigmoid(x):
    return torch.sigmoid(x)
def _layernorm(x, axis=-1, eps=1e-5):
    m = x.mean(dim=axis, keepdim=True)
    v = x.var(dim=axis, keepdim=True, unbiased=False)
    return (x - m) / torch.sqrt(v + eps)
def _scatter_add(tgt, idx, src, axis=0):
    return tgt.clone().index_add_(axis, idx, src)
def _segment_sum(src, seg, n):
    out = torch.zeros((n,) + src.shape[1:], dtype=src.dtype)
    return out.index_add_(0, seg, src)
def _pad(x, pw):
    flat = tuple(v for pair in reversed(pw) for v in pair)
    return torch.nn.functional.pad(x, flat)

kernel_name = 'standalone__deepnorm__sampling'

def setup_inputs():

    _w = (lambda a: (lambda t: t.to(torch.bfloat16) if t.is_floating_point() else t)(torch.as_tensor(a)))
    B, S, D = 1024, 16, 640
    return {
        "x": _w((lambda *s: torch.randn(*s, dtype=torch.bfloat16) * 0.05)(B, S, D)),
        "f": _w((lambda *s: torch.randn(*s, dtype=torch.bfloat16) * 0.05)(B, S, D)),
        "g": _w((lambda *s: torch.randn(*s, dtype=torch.bfloat16) * 0.05)(D) + 1.0),
        "b": _w((lambda *s: torch.randn(*s, dtype=torch.bfloat16) * 0.4)(D)),
        "alpha": _w(float(2.0)),
    }

def reference(x, f, g, b, alpha):
    return _layernorm(alpha * x + f, axis=-1) * g + b
```

```python
import re, sys
N = "standalone__deepnorm__sampling_kernel"
def build(src, stat, M, sbase=40, nwaves=4096, waves_per_wg=4, vtmp=None):
    m = re.search(r"; @launch grid=\((\d+),1,1\) block=\((\d+),1,1\) lds=(\d+)", src)
    g, b, lds = m.group(1, 2, 3)
    src = src.replace(m.group(0), f"; @launch kernel={N} grid=({g},1,1) block=({b},1,1) lds={lds}\n; @launch kernel=diag_kernel grid=(1,1,1) block=(64,1,1) lds=0")
    src = re.sub(r";STAMP (\d)", lambda k: f"s_memrealtime s[{sbase+2*int(k.group(1))}:{sbase+2*int(k.group(1))+1}]", src)
    nv = int(re.search(r"amdhsa_next_free_vgpr (\d+)", src).group(1))
    used = sorted(set(int(x) for x in re.findall(r"s_memrealtime s\[(\d+):", src)))
    o = []
    W = sbase + 16
    o.append(f"s_load_dwordx2 s[{W}:{W+1}], s[0:1], 56")
    o.append("s_waitcnt vmcnt(0) lgkmcnt(0)")
    o.append(f"s_memrealtime s[{sbase+14}:{sbase+15}]")
    o.append("s_waitcnt lgkmcnt(0)")
    o.append("v_lshrrev_b32 v0, 6, v0")
    o.append(f"s_mul_i32 s{W+2}, s2, {waves_per_wg}")
    o.append(f"v_add_u32 v0, s{W+2}, v0")
    o.append("v_lshlrev_b32 v0, 5, v0")
    for i in range(8):
        r = sbase + 2*i
        if r in used or i == 7:
            o.append(f"v_mov_b32 v{4+i}, s{r}")
        else:
            o.append(f"v_mov_b32 v{4+i}, 0")
    o.append("s_mov_b64 exec, 1")
    o.append(f"global_store_dwordx4 v0, v[4:7], s[{W}:{W+1}]")
    o.append(f"global_store_dwordx4 v0, v[8:11], s[{W}:{W+1}] offset:16")
    src = src.replace(";STAMPOUT", "\n".join(o))
    src = re.sub(r"amdhsa_next_free_sgpr \d+", f"amdhsa_next_free_sgpr {W+4}", src)
    kind, A, B = stat
    k = []
    a = k.append
    a(".p2align 8\n.globl diag_kernel\n.type diag_kernel,@function\ndiag_kernel:")
    a("s_cmp_ge_u32 s2, 1\ns_cbranch_scc1 D_end")
    a("s_load_dwordx4 s[4:7], s[0:1], 48")
    a("v_lshlrev_b32 v1, 5, v0")
    a("v_mov_b32 v10, -1\nv_mov_b32 v11, 0\nv_mov_b32 v12, -1\nv_mov_b32 v13, 0\nv_mov_b32 v14, -1\nv_mov_b32 v15, 0\nv_mov_b32 v16, 0")
    a("s_mov_b32 s8, 0")
    a("s_waitcnt lgkmcnt(0)")
    a("D_loop:")
    a(f"global_load_dword v2, v1, s[6:7] offset:{4*A}")
    a(f"global_load_dword v3, v1, s[6:7] offset:{4*B}")
    a("s_waitcnt vmcnt(0)")
    a("v_min_u32 v10, v10, v2\nv_max_u32 v11, v11, v2\nv_min_u32 v12, v12, v3\nv_max_u32 v13, v13, v3")
    a("v_sub_u32 v4, v3, v2\nv_min_u32 v14, v14, v4\nv_max_u32 v15, v15, v4\nv_add_u32 v16, v16, v4")
    a("v_add_u32 v1, 2048, v1")
    a(f"s_add_u32 s8, s8, 1\ns_cmp_lt_u32 s8, {nwaves//64}\ns_cbranch_scc1 D_loop")
    a("s_mov_b32 s10, -1\ns_mov_b32 s11, 0\ns_mov_b32 s12, -1\ns_mov_b32 s13, 0\ns_mov_b32 s14, -1\ns_mov_b32 s15, 0\ns_mov_b32 s16, 0")
    a("s_mov_b32 s8, 0")
    a("D_red:")
    for r, op in ((10,"s_min_u32"),(11,"s_max_u32"),(12,"s_min_u32"),(13,"s_max_u32"),(14,"s_min_u32"),(15,"s_max_u32"),(16,"s_add_u32")):
        a(f"v_readlane_b32 s9, v{r}, s8\ns_nop 3\n{op} s{r}, s{r}, s9")
    a("s_add_u32 s8, s8, 1\ns_cmp_lt_u32 s8, 64\ns_nop 4\ns_cbranch_scc1 D_red")
    if kind == "span": a("s_sub_u32 s20, s13, s10")
    if kind == "minmin": a("s_sub_u32 s20, s12, s10")
    if kind == "maxmax": a("s_sub_u32 s20, s13, s11")
    if kind == "mind": a("s_mov_b32 s20, s14")
    if kind == "maxd": a("s_mov_b32 s20, s15")
    if kind == "avgd":
        import math
        a(f"s_mul_i32 s20, s16, {M}\ns_lshr_b32 s20, s20, {int(math.log2(nwaves))}")
    else:
        a(f"s_mul_i32 s20, s20, {M}")
    a("s_min_u32 s20, s20, 200000")
    a("v_mov_b32 v2, s20\nv_mov_b32 v1, 0\nglobal_store_dword v1, v2, s[4:5]")
    a("s_memrealtime s[22:23]\ns_waitcnt lgkmcnt(0)")
    a("D_spin:")
    a("s_memrealtime s[24:25]\ns_waitcnt lgkmcnt(0)\ns_sub_u32 s26, s24, s22\ns_cmp_lt_u32 s26, s20\ns_cbranch_scc1 D_spin")
    a("D_end:\ns_endpgm")
    src = src.replace('.section .rodata,"a"', "\n".join(k) + '\n.section .rodata,"a"')
    src += """.p2align 6
.amdhsa_kernel diag_kernel
  .amdhsa_next_free_vgpr 24
  .amdhsa_next_free_sgpr 32
  .amdhsa_accum_offset 24
  .amdhsa_group_segment_fixed_size 0
  .amdhsa_kernarg_size 64
  .amdhsa_user_sgpr_count 2
  .amdhsa_user_sgpr_kernarg_segment_ptr 1
  .amdhsa_system_sgpr_workgroup_id_x 1
.end_amdhsa_kernel
"""
    return src
if __name__ == "__main__":
    src = open(sys.argv[1]).read()
    out = sys.argv[2]
    kind, A, B, M = sys.argv[3], int(sys.argv[4]), int(sys.argv[5]), int(sys.argv[6])
    nw = int(sys.argv[7]) if len(sys.argv) > 7 else 4096
    wpw = int(sys.argv[8]) if len(sys.argv) > 8 else 4
    open(out, "w").write(build(src, (kind, A, B), M, nwaves=nw, waves_per_wg=wpw))
```

```python
import re, sys
N = "standalone__deepnorm__sampling_kernel"
def build(src, stat, M, sbase=40, nwaves=4096, waves_per_wg=4, vtmp=None):
    m = re.search(r"; @launch grid=\((\d+),1,1\) block=\((\d+),1,1\) lds=(\d+)", src)
    g, b, lds = m.group(1, 2, 3)
    src = src.replace(m.group(0), f"; @launch kernel={N} grid=({g},1,1) block=({b},1,1) lds={lds}\n; @launch kernel=diag_kernel grid=(1,1,1) block=(64,1,1) lds=0")
    src = re.sub(r";STAMP (\d)", lambda k: f"s_memrealtime s[{sbase+2*int(k.group(1))}:{sbase+2*int(k.group(1))+1}]", src)
    nv = int(re.search(r"amdhsa_next_free_vgpr (\d+)", src).group(1))
    used = sorted(set(int(x) for x in re.findall(r"s_memrealtime s\[(\d+):", src)))
    o = []
    W = sbase + 16
    o.append(f"s_load_dwordx2 s[{W}:{W+1}], s[0:1], 56")
    if stat[0] != "e2e":
        o.append("s_waitcnt vmcnt(0) lgkmcnt(0)")
    o.append(f"s_memrealtime s[{sbase+14}:{sbase+15}]")
    o.append("s_waitcnt lgkmcnt(0)")
    o.append("v_lshrrev_b32 v0, 6, v0")
    o.append(f"s_mul_i32 s{W+2}, s2, {waves_per_wg}")
    o.append(f"v_add_u32 v0, s{W+2}, v0")
    o.append("v_lshlrev_b32 v0, 5, v0")
    for i in range(8):
        r = sbase + 2*i
        if r in used or i == 7:
            o.append(f"v_mov_b32 v{4+i}, s{r}")
        else:
            o.append(f"v_mov_b32 v{4+i}, 0")
    o.append("s_mov_b64 exec, 1")
    o.append(f"global_store_dwordx4 v0, v[4:7], s[{W}:{W+1}]")
    o.append(f"global_store_dwordx4 v0, v[8:11], s[{W}:{W+1}] offset:16")
    src = src.replace(";STAMPOUT", "\n".join(o))
    src = re.sub(r"amdhsa_next_free_sgpr \d+", f"amdhsa_next_free_sgpr {W+4}", src)
    kind, A, B = stat
    k = []
    a = k.append
    a(".p2align 8\n.globl diag_kernel\n.type diag_kernel,@function\ndiag_kernel:")
    a("s_cmp_ge_u32 s2, 1\ns_cbranch_scc1 D_end")
    a("s_memrealtime s[28:29]")
    a("s_load_dwordx4 s[4:7], s[0:1], 48")
    a("v_lshlrev_b32 v1, 5, v0")
    a("v_mov_b32 v10, -1\nv_mov_b32 v11, 0\nv_mov_b32 v12, -1\nv_mov_b32 v13, 0\nv_mov_b32 v14, -1\nv_mov_b32 v15, 0\nv_mov_b32 v16, 0")
    a("s_mov_b32 s8, 0")
    a("s_waitcnt lgkmcnt(0)")
    a("D_loop:")
    a(f"global_load_dword v2, v1, s[6:7] offset:{4*A}")
    a(f"global_load_dword v3, v1, s[6:7] offset:{4*B}")
    a("s_waitcnt vmcnt(0)")
    a("v_min_u32 v10, v10, v2\nv_max_u32 v11, v11, v2\nv_min_u32 v12, v12, v3\nv_max_u32 v13, v13, v3")
    a("v_sub_u32 v4, v3, v2\nv_min_u32 v14, v14, v4\nv_max_u32 v15, v15, v4\nv_add_u32 v16, v16, v4")
    a("v_add_u32 v1, 2048, v1")
    a(f"s_add_u32 s8, s8, 1\ns_cmp_lt_u32 s8, {nwaves//64}\ns_cbranch_scc1 D_loop")
    a("s_mov_b32 s10, -1\ns_mov_b32 s11, 0\ns_mov_b32 s12, -1\ns_mov_b32 s13, 0\ns_mov_b32 s14, -1\ns_mov_b32 s15, 0\ns_mov_b32 s16, 0")
    a("s_mov_b32 s8, 0")
    a("D_red:")
    for r, op in ((10,"s_min_u32"),(11,"s_max_u32"),(12,"s_min_u32"),(13,"s_max_u32"),(14,"s_min_u32"),(15,"s_max_u32"),(16,"s_add_u32")):
        a(f"v_readlane_b32 s9, v{r}, s8\ns_nop 3\n{op} s{r}, s{r}, s9")
    a("s_add_u32 s8, s8, 1\ns_cmp_lt_u32 s8, 64\ns_nop 4\ns_cbranch_scc1 D_red")
    if kind == "span": a("s_sub_u32 s20, s13, s10")
    if kind == "e2e": a("s_sub_u32 s20, s28, s10")
    if kind == "minmin": a("s_sub_u32 s20, s12, s10")
    if kind == "maxmax": a("s_sub_u32 s20, s13, s11")
    if kind == "mind": a("s_mov_b32 s20, s14")
    if kind == "maxd": a("s_mov_b32 s20, s15")
    if kind == "avgd":
        import math
        a(f"s_mul_i32 s20, s16, {M}\ns_lshr_b32 s20, s20, {int(math.log2(nwaves))}")
    else:
        a(f"s_mul_i32 s20, s20, {M}")
    a("s_min_u32 s20, s20, 200000")
    a("v_mov_b32 v2, s20\nv_mov_b32 v1, 0\nglobal_store_dword v1, v2, s[4:5]")
    a("s_memrealtime s[22:23]\ns_waitcnt lgkmcnt(0)")
    a("D_spin:")
    a("s_memrealtime s[24:25]\ns_waitcnt lgkmcnt(0)\ns_sub_u32 s26, s24, s22\ns_cmp_lt_u32 s26, s20\ns_cbranch_scc1 D_spin")
    a("D_end:\ns_endpgm")
    src = src.replace('.section .rodata,"a"', "\n".join(k) + '\n.section .rodata,"a"')
    src += """.p2align 6
.amdhsa_kernel diag_kernel
  .amdhsa_next_free_vgpr 24
  .amdhsa_next_free_sgpr 32
  .amdhsa_accum_offset 24
  .amdhsa_group_segment_fixed_size 0
  .amdhsa_kernarg_size 64
  .amdhsa_user_sgpr_count 2
  .amdhsa_user_sgpr_kernarg_segment_ptr 1
  .amdhsa_system_sgpr_workgroup_id_x 1
.end_amdhsa_kernel
"""
    return src
if __name__ == "__main__":
    src = open(sys.argv[1]).read()
    out = sys.argv[2]
    kind, A, B, M = sys.argv[3], int(sys.argv[4]), int(sys.argv[5]), int(sys.argv[6])
    nw = int(sys.argv[7]) if len(sys.argv) > 7 else 4096
    wpw = int(sys.argv[8]) if len(sys.argv) > 8 else 4
    open(out, "w").write(build(src, (kind, A, B), M, nwaves=nw, waves_per_wg=wpw))
```

```python
import re, sys
N = "standalone__deepnorm__sampling_kernel"
def build(src, stat, M, sbase=40, nwaves=4096, waves_per_wg=4, vtmp=None):
    m = re.search(r"; @launch grid=\((\d+),1,1\) block=\((\d+),1,1\) lds=(\d+)", src)
    g, b, lds = m.group(1, 2, 3)
    src = src.replace(m.group(0), f"; @launch kernel={N} grid=({g},1,1) block=({b},1,1) lds={lds}\n; @launch kernel=diag_kernel grid=(1,1,1) block=(64,1,1) lds=0")
    src = re.sub(r";STAMP (\d)", lambda k: f"s_memrealtime s[{sbase+2*int(k.group(1))}:{sbase+2*int(k.group(1))+1}]", src)
    nv = int(re.search(r"amdhsa_next_free_vgpr (\d+)", src).group(1))
    used = sorted(set(int(x) for x in re.findall(r"s_memrealtime s\[(\d+):", src)))
    o = []
    W = sbase + 16
    o.append(f"s_load_dwordx2 s[{W}:{W+1}], s[0:1], 56")
    if stat[0] != "e2e":
        o.append("s_waitcnt vmcnt(0) lgkmcnt(0)")
    o.append(f"s_memrealtime s[{sbase+14}:{sbase+15}]")
    o.append("s_waitcnt lgkmcnt(0)")
    o.append("v_lshrrev_b32 v0, 6, v0")
    o.append(f"s_mul_i32 s{W+2}, s2, {waves_per_wg}")
    o.append(f"v_add_u32 v0, s{W+2}, v0")
    o.append("v_lshlrev_b32 v0, 5, v0")
    for i in range(8):
        r = sbase + 2*i
        if r in used or i == 7:
            o.append(f"v_mov_b32 v{4+i}, s{r}")
        elif i == 6:
            o.append(f"s_getreg_b32 s{W+2}, hwreg(HW_REG_XCC_ID)")
            o.append(f"s_getreg_b32 s{W+3}, hwreg(HW_REG_HW_ID)")
            o.append(f"s_and_b32 s{W+2}, s{W+2}, 15")
            o.append(f"s_lshl_b32 s{W+2}, s{W+2}, 24")
            o.append(f"s_and_b32 s{W+3}, s{W+3}, 0xffffff")
            o.append(f"s_or_b32 s{W+2}, s{W+2}, s{W+3}")
            o.append(f"s_or_b32 s{W+2}, s{W+2}, 0x80000000")
            o.append(f"v_mov_b32 v{4+i}, s{W+2}")
        else:
            o.append(f"v_mov_b32 v{4+i}, 0")
    o.append("s_mov_b64 exec, 1")
    o.append(f"global_store_dwordx4 v0, v[4:7], s[{W}:{W+1}]")
    o.append(f"global_store_dwordx4 v0, v[8:11], s[{W}:{W+1}] offset:16")
    src = src.replace(";STAMPOUT", "\n".join(o))
    src = re.sub(r"amdhsa_next_free_sgpr \d+", f"amdhsa_next_free_sgpr {W+4}", src)
    kind, A, B = stat
    k = []
    a = k.append
    a(".p2align 8\n.globl diag_kernel\n.type diag_kernel,@function\ndiag_kernel:")
    a("s_cmp_ge_u32 s2, 1\ns_cbranch_scc1 D_end")
    a("s_memrealtime s[28:29]")
    a("s_load_dwordx4 s[4:7], s[0:1], 48")
    a("v_lshlrev_b32 v1, 5, v0")
    a("v_mov_b32 v10, -1\nv_mov_b32 v11, 0\nv_mov_b32 v12, -1\nv_mov_b32 v13, 0\nv_mov_b32 v14, -1\nv_mov_b32 v15, 0\nv_mov_b32 v16, 0")
    a("s_mov_b32 s8, 0")
    a("s_waitcnt lgkmcnt(0)")
    a("D_loop:")
    a(f"global_load_dword v2, v1, s[6:7] offset:{4*A}")
    a(f"global_load_dword v3, v1, s[6:7] offset:{4*B}")
    a("s_waitcnt vmcnt(0)")
    a("v_min_u32 v10, v10, v2\nv_max_u32 v11, v11, v2\nv_min_u32 v12, v12, v3\nv_max_u32 v13, v13, v3")
    a("v_sub_u32 v4, v3, v2\nv_min_u32 v14, v14, v4\nv_max_u32 v15, v15, v4\nv_add_u32 v16, v16, v4")
    a("v_add_u32 v1, 2048, v1")
    a(f"s_add_u32 s8, s8, 1\ns_cmp_lt_u32 s8, {nwaves//64}\ns_cbranch_scc1 D_loop")
    a("s_mov_b32 s10, -1\ns_mov_b32 s11, 0\ns_mov_b32 s12, -1\ns_mov_b32 s13, 0\ns_mov_b32 s14, -1\ns_mov_b32 s15, 0\ns_mov_b32 s16, 0")
    a("s_mov_b32 s8, 0")
    a("D_red:")
    for r, op in ((10,"s_min_u32"),(11,"s_max_u32"),(12,"s_min_u32"),(13,"s_max_u32"),(14,"s_min_u32"),(15,"s_max_u32"),(16,"s_add_u32")):
        a(f"v_readlane_b32 s9, v{r}, s8\ns_nop 3\n{op} s{r}, s{r}, s9")
    a("s_add_u32 s8, s8, 1\ns_cmp_lt_u32 s8, 64\ns_nop 4\ns_cbranch_scc1 D_red")
    if kind == "span": a("s_sub_u32 s20, s13, s10")
    if kind == "e2e": a("s_sub_u32 s20, s28, s10")
    if kind == "minmin": a("s_sub_u32 s20, s12, s10")
    if kind == "maxmax": a("s_sub_u32 s20, s13, s11")
    if kind == "mind": a("s_mov_b32 s20, s14")
    if kind == "maxd": a("s_mov_b32 s20, s15")
    if kind == "avgd":
        import math
        a(f"s_mul_i32 s20, s16, {M}\ns_lshr_b32 s20, s20, {int(math.log2(nwaves))}")
    else:
        a(f"s_mul_i32 s20, s20, {M}")
    a("s_min_u32 s20, s20, 200000")
    a("v_mov_b32 v2, s20\nv_mov_b32 v1, 0\nglobal_store_dword v1, v2, s[4:5]")
    a("s_memrealtime s[22:23]\ns_waitcnt lgkmcnt(0)")
    a("D_spin:")
    a("s_memrealtime s[24:25]\ns_waitcnt lgkmcnt(0)\ns_sub_u32 s26, s24, s22\ns_cmp_lt_u32 s26, s20\ns_cbranch_scc1 D_spin")
    a("D_end:\ns_endpgm")
    src = src.replace('.section .rodata,"a"', "\n".join(k) + '\n.section .rodata,"a"')
    src += """.p2align 6
.amdhsa_kernel diag_kernel
  .amdhsa_next_free_vgpr 24
  .amdhsa_next_free_sgpr 32
  .amdhsa_accum_offset 24
  .amdhsa_group_segment_fixed_size 0
  .amdhsa_kernarg_size 64
  .amdhsa_user_sgpr_count 2
  .amdhsa_user_sgpr_kernarg_segment_ptr 1
  .amdhsa_system_sgpr_workgroup_id_x 1
.end_amdhsa_kernel
"""
    return src
if __name__ == "__main__":
    src = open(sys.argv[1]).read()
    out = sys.argv[2]
    kind, A, B, M = sys.argv[3], int(sys.argv[4]), int(sys.argv[5]), int(sys.argv[6])
    nw = int(sys.argv[7]) if len(sys.argv) > 7 else 4096
    wpw = int(sys.argv[8]) if len(sys.argv) > 8 else 4
    open(out, "w").write(build(src, (kind, A, B), M, nwaves=nw, waves_per_wg=wpw))
```

```python
import struct, re, sys
NAME = "standalone__deepnorm__sampling_kernel"
def f2u(x): return struct.unpack("<I", struct.pack("<f", x))[0]
NB = 20971520
HEAD = """; Kernarg layout for this problem (64 bytes, ptrs only, base s[0:1]):
; @launch grid=(256,1,1) block=(1024,1,1) lds=5120
;
;
"""
L = []
def a(s, c=None):
    if s.endswith(":"): L.append(s + (f"{' '*max(1,46-len(s))}; {c}" if c else ""))
    else: L.append("    " + s + (f"{' '*max(1,74-len(s))}; {c}" if c else ""))
def cm(c): L.append("    ; " + c)

X, F, BB, T, GB, S, Q = 8, 28, 48, 88, 88, 4, 6
N, RW = 2, 5
a(f"{NAME}:")
a("s_load_dwordx16 s[4:19], s[0:1], 0", "s[4:5]=x s[6:7]=f s[8:9]=g s[10:11]=b s[12:13]=alpha s[14:15]=out")
a("s_cmpk_ge_u32 s2, 256")
a("s_cbranch_scc1 L_end", "workgroups past the data leave")
a("v_readfirstlane_b32 s23, v0", "s23 = 64 * wave")
a("s_mul_i32 s3, s2, 5120", "workgroup * 4 rows")
a("v_lshrrev_b32 v1, 4, v0")
a("v_lshlrev_b32 v2, 4, v0")
a("v_lshl_add_u32 v1, v1, 10, v2", "(tid>>4)*1280 + (tid&15)*16")
a("s_mul_i32 s25, s23, 20400", "wave * (1024-4) rows")
a("s_add_u32 s3, s3, s25")
a("v_add_u32 v1, s3, v1", "v1 = this lane's byte offset in x / f / out")
a("s_cmpk_ge_u32 s23, 768")
a("s_cbranch_scc1 L_tramp", "waves 12..15 go by way of the middle of the code (instruction prefetch)")
a("s_cmpk_ge_u32 s23, 256")
a("s_cbranch_scc1 L_wait")
a("v_min_u32 v6, 0x9f, v0", "waves 0..3: lane i < 160 stages 4 values of g and of b")
a("v_lshlrev_b32 v3, 3, v6")
a("s_waitcnt lgkmcnt(0)")
a("s_load_dword s20, s[12:13], 0", "alpha (bf16, low half)")
a(f"global_load_dwordx2 v[{BB}:{BB+1}], v3, s[8:9]")
a(f"global_load_dwordx2 v[{BB+2}:{BB+3}], v3, s[10:11]")
a("L_ld:")
for k in range(5):
    a(f"global_load_dwordx4 v[{X+4*k}:{X+4*k+3}], v1, s[4:5] offset:{256*k} nt")
for k in range(5):
    a(f"global_load_dwordx4 v[{F+4*k}:{F+4*k+3}], v1, s[6:7] offset:{256*k} nt")
a("s_mov_b32 s24, 0", "s24: 0 = plain wave, 1 / 2 = first / second pass of the adopting wave")
a("L_ldone:")
cm("rest of the barrier chain; waves 0..3 keep the last one for after the g/b staging")
a("s_max_u32 s26, s23, 0x100")
a("s_branch L_postc")
a("L_post:")
a("s_barrier")
a("s_add_u32 s26, s26, 64")
a("L_postc:")
a("s_cmpk_lt_u32 s26, 768")
a("s_cbranch_scc1 L_post")
a("s_mov_b32 s22, 0xffff0000")
a("v_and_b32 v2, 0xf0, v2", "v2 = (tid&15)*16 : LDS read address")
a("s_cmpk_lt_u32 s23, 256")
a("s_cbranch_scc1 L_stage")
a("L_staged:")
a("s_waitcnt lgkmcnt(0)")
a("s_lshl_b32 s20, s20, 16", "alpha as fp32")
a("L_pass:")
a("s_cmpk_lt_u32 s23, 768", "scc = wave < 12, kept to the end of the pass")
a("s_cbranch_scc1 L_early")
a("s_waitcnt vmcnt(6)")
a("s_barrier", "waves 12..15 open the write phase")
a("L_early:")
cm("y = alpha*x + f in fp32 (in place, register pairs), row sum in v[4:5]")
yp = {}
for k in range(5):
    a(f"s_waitcnt vmcnt({4-k})")
    for jj in (0, 2):
        j = 4*k + jj
        x0, x1, f0, f1 = X+j, X+j+1, F+j, F+j+1
        a(f"v_lshlrev_b32 v{T}, 16, v{x0}")
        a(f"v_and_b32 v{T+1}, s22, v{x0}")
        a(f"v_lshlrev_b32 v{T+2}, 16, v{f0}")
        a(f"v_and_b32 v{T+3}, s22, v{f0}")
        a(f"v_lshlrev_b32 v{T+4}, 16, v{x1}")
        a(f"v_and_b32 v{T+5}, s22, v{x1}")
        a(f"v_lshlrev_b32 v{f0}, 16, v{f1}")
        a(f"v_and_b32 v{f1}, s22, v{f1}")
        a(f"v_pk_fma_f32 v[{x0}:{x1}], v[{T}:{T+1}], s[20:21], v[{T+2}:{T+3}] op_sel_hi:[1,0,1]")
        a(f"v_pk_fma_f32 v[{f0}:{f1}], v[{T+4}:{T+5}], s[20:21], v[{f0}:{f1}] op_sel_hi:[1,0,1]")
        yp[j], yp[j+1] = x0, f0
        if j == 0:
            a(f"v_pk_add_f32 v[4:5], v[{x0}:{x1}], v[{f0}:{f1}]")
        else:
            a(f"v_pk_add_f32 v[4:5], v[4:5], v[{x0}:{x1}]")
            a(f"v_pk_add_f32 v[4:5], v[4:5], v[{f0}:{f1}]")
gbuf = lambda k: GB + 16*(k % 2)
def rdl(k):
    b = gbuf(k)
    return [f"ds_read_b128 v[{b}:{b+3}], v2 offset:{k*512}",
            f"ds_read_b128 v[{b+8}:{b+11}], v2 offset:{2560+k*512}",
            f"ds_read_b128 v[{b+4}:{b+7}], v2 offset:{k*512+256}",
            f"ds_read_b128 v[{b+12}:{b+15}], v2 offset:{2560+k*512+256}"]
def reduce16(r, fill):
    for sh in (8, 4, 2, 1):
        if fill: a(fill.pop(0)); a(fill.pop(0))
        else: a("s_nop 1")
        a(f"v_add_f32_dpp v{r}, v{r}, v{r} row_ror:{sh} row_mask:0xf bank_mask:0xf")
cm("mean over the 16 lanes of the row; the first g/b reads supply the DPP wait states")
a(f"v_add_f32 v{S}, v{S}, v{S+1}")
reduce16(S, rdl(0) + rdl(1))
inv = f2u(1.0/640)
a(f"v_mul_f32 v{S}, 0x{inv:08x}, v{S}", "mean = sum / 640")
cm("d = y - mean, sum of squares in v[6:7]")
for j in range(20):
    p = yp[j]
    a(f"v_pk_add_f32 v[{p}:{p+1}], v[{p}:{p+1}], v[{S}:{S+1}] op_sel_hi:[1,0] neg_lo:[0,1] neg_hi:[0,1]")
    if j == 0: a(f"v_pk_mul_f32 v[{Q}:{Q+1}], v[{p}:{p+1}], v[{p}:{p+1}]")
    else: a(f"v_pk_fma_f32 v[{Q}:{Q+1}], v[{p}:{p+1}], v[{p}:{p+1}], v[{Q}:{Q+1}]")
a(f"v_add_f32 v{Q}, v{Q}, v{Q+1}")
reduce16(Q, None)
a(f"v_mov_b32 v{Q+1}, 0x{f2u(1e-5):08x}", "eps")
a(f"v_fmac_f32 v{Q+1}, 0x{inv:08x}, v{Q}", "var + eps")
a(f"v_rsq_f32 v{Q}, v{Q+1}")
cm("out = d * rstd * g + b, packed to bf16 in v[8:27]")
issued = 2
for k in range(5):
    b = gbuf(k)
    if k == 0: a(f"s_waitcnt lgkmcnt({4*(issued-k-1)})", "also the wait state after v_rsq")
    for jj in range(4):
        p = yp[4*k+jj]
        a(f"v_pk_mul_f32 v[{p}:{p+1}], v[{p}:{p+1}], v[{Q}:{Q+1}] op_sel_hi:[1,0]")
    if k: a(f"s_waitcnt lgkmcnt({4*(issued-k-1)})")
    for jj in range(4):
        p = yp[4*k+jj]
        a(f"v_pk_fma_f32 v[{p}:{p+1}], v[{p}:{p+1}], v[{b+2*jj}:{b+2*jj+1}], v[{b+8+2*jj}:{b+8+2*jj+1}]")
    if issued < 5:
        for z in rdl(issued): a(z)
        issued += 1
    for jj in range(4):
        p = yp[4*k+jj]
        a(f"v_cvt_pk_bf16_f32 v{X+4*k+jj}, v{p}, v{p+1}")
def store(k, pol, va=1, o=X):
    a(f"global_store_dwordx4 v{va}, v[{o+4*k}:{o+4*k+3}], s[14:15] offset:{256*k}{pol}")
a("s_cbranch_scc0 L_last4")
a("s_cmp_eq_u32 s24, 1")
a("s_cbranch_scc1 L_swap")
a("s_cmp_eq_u32 s24, 2")
a("s_barrier", "write phase")
for k in range(5): store(k, " nt")
a("s_cbranch_scc0 L_end")
a("s_mov_b64 exec, s[28:29]", "the adopted rows")
for k in range(5): store(k, " nt", 3, BB)
a("L_end:")
a("s_endpgm")
a("L_wait:", "waves 4..15: roles, then wait for the turn to issue")
a("s_bitcmp1_b32 s2, 0")
a(f"s_cselect_b32 s26, {N*16}, 0")
a(f"v_subrev_u32 v7, {RW*64+64-16*N}, v0")
a("v_cmp_le_u32 vcc, s26, v7", "odd workgroup: the last 2 rows of wave 5 go to the neighbour")
a("s_mov_b64 exec, vcc")
a(f"s_xor_b32 s27, s23, {RW*64}")
a("s_or_b32 s27, s27, s26")
a("s_cbranch_scc0 L_adopt", "wave 5 of an even workgroup")
a("s_min_u32 s26, s23, 768")
a("s_waitcnt lgkmcnt(0)")
a("s_load_dword s20, s[12:13], 0", "alpha")
a("L_pre:")
a("s_sub_u32 s26, s26, 64")
a("s_cmpk_lt_u32 s26, 0x100")
a("s_barrier")
a("s_cbranch_scc1 L_ld")
a("s_branch L_pre")
a("L_last4:", "waves 12..15: the last stores may stay in L2 for the end-of-kernel write-back")
for k in range(5): store(k, " nt" if k < 3 else "")
a("s_endpgm")
a("L_stage:", "g / b -> fp32 in LDS at (i>>5)*512 + (i&1)*256 + ((i>>1)&15)*16, b at +2560")
a("v_and_b32 v4, 1, v6")
a("v_lshlrev_b32 v4, 8, v4")
a("v_lshrrev_b32 v5, 5, v6")
a("v_lshl_add_u32 v4, v5, 9, v4")
a("v_and_b32 v3, 0xf0, v3")
a("v_add_u32 v3, v3, v4")
a("v_cmp_gt_u32 vcc, 0xa0, v0")
a("s_waitcnt vmcnt(10)")
for i in range(4):
    a(f"v_lshlrev_b32 v{T+2*i}, 16, v{BB+i}")
    a(f"v_and_b32 v{T+2*i+1}, s22, v{BB+i}")
a("s_mov_b64 exec, vcc")
a(f"ds_write_b128 v3, v[{T}:{T+3}]")
a(f"ds_write_b128 v3, v[{T+4}:{T+7}] offset:2560")
a("s_mov_b64 exec, -1")
a("s_waitcnt lgkmcnt(0)")
a("s_barrier", "last barrier of the chain: g / b are visible")
a("s_branch L_staged")
a("L_adopt:", "own rows -> v[48:87], adopted rows -> v[8:47] (other row slots read out of range = 0)")
a("s_mov_b32 s24, 1")
a(f"s_lshr_b64 s[28:29], -1, {N*16}")
a("s_not_b64 s[28:29], s[28:29]", "lanes of the adopted rows")
a("v_add_u32 v3, 5120, v1", "same wave of the next workgroup")
a("v_cndmask_b32 v6, 2.0, v3, s[28:29]", "other lanes: offset 0x40000000, past num_records")
a(f"s_mov_b32 s34, {NB}")
a("s_mov_b32 s35, 0x20000")
a(f"s_mov_b32 s38, {NB}")
a("s_mov_b32 s39, 0x20000")
a("s_waitcnt lgkmcnt(0)")
a("s_load_dword s20, s[12:13], 0", "alpha")
a("s_mov_b64 s[32:33], s[4:5]")
a("s_mov_b64 s[36:37], s[6:7]")
for _ in range(RW-3): a("s_barrier")
for base, va in ((BB, 1), (X, 6)):
    for k in range(5):
        a(f"buffer_load_dwordx4 v[{base+4*k}:{base+4*k+3}], v{va}, s[32:35], 0 offen offset:{256*k} nt")
    for k in range(5):
        a(f"buffer_load_dwordx4 v[{base+20+4*k}:{base+20+4*k+3}], v{va}, s[36:39], 0 offen offset:{256*k} nt")
a("s_branch L_ldone")
a("L_swap:", "park the adopted rows' result in v[48:67], then process the own rows")
a("s_mov_b32 s24, 2")
for r in range(20): a(f"v_swap_b32 v{X+r}, v{BB+r}")
for r in range(20, 40): a(f"v_mov_b32 v{X+r}, v{BB+r}")
a("s_branch L_pass")

def isize(l):
    l = l.split(";")[0].strip(); op = l.split()[0]
    if op.startswith(("global_","buffer_","ds_","s_load","v_pk_","v_cvt_pk","v_lshl_add","v_cndmask")) or "dpp" in op: return 8
    if op.startswith(("s_cmpk","s_waitcnt","s_nop","s_cbranch","s_branch","s_barrier","s_endpgm")): return 4
    for t in re.split(r"[ ,]+", l)[1:]:
        if re.fullmatch(r"-?(0x[0-9a-f]+|\d+)", t) and not -16 <= int(t, 0) <= 64: return 8
    return 4
out = []; off = 0; done = False
for l in L:
    if l.startswith("    ") and not l.startswith("    ;"):
        if not done and off + 4 >= 0x440:
            out += ["    s_branch L_over", "L_tramp:" + " "*38 + "; first line past the entry's fetch window", "    s_branch L_wait", "L_over:"]; done = True
        off += isize(l)
    out.append(l)
txt = HEAD + f""".amdgcn_target "amdgcn-amd-amdhsa--gfx950"
.text
.globl {NAME}
.p2align 13
.p2align 8
.type {NAME},@function
""" + "\n".join(out) + f"""
.section .rodata,"a"
.p2align 6
.amdhsa_kernel {NAME}
  .amdhsa_next_free_vgpr 120
  .amdhsa_next_free_sgpr 40
  .amdhsa_accum_offset 120
  .amdhsa_group_segment_fixed_size 0
  .amdhsa_kernarg_size 64
  .amdhsa_user_sgpr_count 2
  .amdhsa_user_sgpr_kernarg_segment_ptr 1
  .amdhsa_system_sgpr_workgroup_id_x 1
  .amdhsa_float_denorm_mode_32 3
.end_amdhsa_kernel
"""
open(sys.argv[1], "w").write(txt)
```

```python
import re
N = "standalone__deepnorm__sampling_kernel"
def build(real, slot, off, mul=5, pre=None):
    s = real.replace("; @launch grid=(256,1,1) block=(1024,1,1) lds=5120", f"; @launch kernel=probe_kernel grid=(1,1,1) block=(64,1,1) lds=0\n; @launch kernel={N} grid=(256,1,1) block=(1024,1,1) lds=5120")
    k = f""".p2align 8
.globl probe_kernel
.type probe_kernel,@function
probe_kernel:
s_cmp_ge_u32 s2, 1
s_cbranch_scc1 P_end
s_load_dwordx2 s[4:5], s[0:1], {slot*8}
s_load_dwordx2 s[6:7], s[0:1], 48
v_mov_b32 v1, {off}
v_mov_b32 v5, {pre if pre is not None else 0}
s_mov_b64 exec, 1
s_waitcnt lgkmcnt(0)
""" + ("global_load_dword v2, v5, s[4:5] nt\ns_waitcnt vmcnt(0)\n" if pre is not None else "") + f"""s_memtime s[10:11]
s_waitcnt lgkmcnt(0)
global_load_dword v2, v1, s[4:5] nt
s_waitcnt vmcnt(0)
s_memtime s[12:13]
s_waitcnt lgkmcnt(0)
global_load_dword v3, v1, s[4:5] offset:128 nt
s_waitcnt vmcnt(0)
s_memtime s[14:15]
s_waitcnt lgkmcnt(0)
s_sub_u32 s16, s12, s10
s_sub_u32 s17, s14, s12
s_sub_u32 s20, s16, s17
s_add_u32 s20, s20, 400
s_max_i32 s20, s20, 0
s_mul_i32 s20, s20, {mul}
s_min_u32 s20, s20, 100000
s_memrealtime s[22:23]
s_waitcnt lgkmcnt(0)
P_spin:
s_memrealtime s[24:25]
s_waitcnt lgkmcnt(0)
s_sub_u32 s26, s24, s22
s_cmp_lt_u32 s26, s20
s_cbranch_scc1 P_spin
P_end:
s_endpgm
"""
    s = s.replace('.section .rodata,"a"', k + '.section .rodata,"a"')
    s += """.p2align 6
.amdhsa_kernel probe_kernel
  .amdhsa_next_free_vgpr 8
  .amdhsa_next_free_sgpr 32
  .amdhsa_accum_offset 8
  .amdhsa_group_segment_fixed_size 0
  .amdhsa_kernarg_size 64
  .amdhsa_user_sgpr_count 2
  .amdhsa_user_sgpr_kernarg_segment_ptr 1
  .amdhsa_system_sgpr_workgroup_id_x 1
.end_amdhsa_kernel
"""
    return s
real = open("fin.s").read()
open("p_zero.s","w").write(build(real, 0, 0, mul=0))
open("p_x0.s","w").write(build(real, 0, 0))
open("p_f17.s","w").write(build(real, 1, 17<<20))
open("p_out.s","w").write(build(real, 5, 9<<20))
open("p_g.s","w").write(build(real, 2, 0))
open("p_x17pre.s","w").write(build(real, 0, 17<<20, pre=0))
```
